```python
import torch

def _softmax(x, axis=-1):
    return torch.softmax(x, dim=axis)

def _gelu(x):
    return torch.nn.functional.gelu(x, approximate='tanh')

def _silu(x):
    return torch.nn.functional.silu(x)

def _sigmoid(x):
    return torch.sigmoid(x)

def _layernorm(x, axis=-1, eps=1e-05):
    m = x.mean(dim=axis, keepdim=True)
    v = x.var(dim=axis, keepdim=True, unbiased=False)
    return (x - m) / torch.sqrt(v + eps)

def _scatter_add(tgt, idx, src, axis=0):
    return tgt.clone().index_add_(axis, idx, src)

def _segment_sum(src, seg, n):
    out = torch.zeros((n,) + src.shape[1:], dtype=src.dtype)
    return out.index_add_(0, seg, src)

def _pad(x, pw):
    flat = tuple((v for pair in reversed(pw) for v in pair))
    return torch.nn.functional.pad(x, flat)
kernel_name = 'interleave_layers__sliding_local_dilated__mixer_gmlp__prompt'

def setup_inputs():

    _w = lambda a: (lambda t: t.to(torch.bfloat16) if t.is_floating_point() else t)(torch.as_tensor(a))

    def _A_setup():
        B, S, D = (1, 2048, 576)
        return {'x': _w((lambda *s: torch.randn(*s, dtype=torch.bfloat16) * 0.05)(B, S, D)), 'wqkv': _w((lambda *s: torch.randn(*s, dtype=torch.bfloat16) * 0.05)(D, 3 * D)), 'wo': _w((lambda *s: torch.randn(*s, dtype=torch.bfloat16) * 0.05)(D, D))}
    _A_in = _A_setup()

    def _B_setup():
        B, S, D, F = (1, 2048, 576, 4608)
        Fh = F // 2
        return {'x': _w((lambda *s: torch.randn(*s, dtype=torch.bfloat16) * 0.05)(B, S, D)), 'w_in': _w((lambda *s: torch.randn(*s, dtype=torch.bfloat16) * 0.2)(D, 2 * Fh)), 'w_sp': _w(0.01 * (lambda *s: torch.randn(*s, dtype=torch.bfloat16) * 0.2)(S, S)), 'b_sp': _w(1.0 + 0.01 * (lambda *s: torch.randn(*s, dtype=torch.bfloat16) * 0.05)(S)), 'w_out': _w((lambda *s: torch.randn(*s, dtype=torch.bfloat16) * 0.05)(Fh, D))}
    _B_in = _B_setup()
    return {'A_x': _A_in['x'], 'A_wqkv': _A_in['wqkv'], 'A_wo': _A_in['wo'], 'B_x': _B_in['x'], 'B_w_in': _B_in['w_in'], 'B_w_sp': _B_in['w_sp'], 'B_b_sp': _B_in['b_sp'], 'B_w_out': _B_in['w_out']}

def reference(A_x, A_wqkv, A_wo, B_x, B_w_in, B_w_sp, B_b_sp, B_w_out):

    def _A_ref(x, wqkv, wo):
        B, S, D = x.shape
        H = 32
        Dh = D // H
        W, dil = (8, 2)
        qkv = (lambda x, *d: x.permute(*d))((x @ wqkv).reshape(B, S, 3, H, Dh), 2, 0, 3, 1, 4)
        q, k, v = (qkv[0], qkv[1], qkv[2])
        scale = Dh ** (-0.5)
        pos = torch.arange(S)
        off = torch.arange(W) * dil
        idx = pos[:, None] - off[None, :]
        mask = idx >= 0
        idx_c = torch.where(mask, idx, 0).reshape(-1)
        kg = k[:, :, idx_c, :].reshape(B, H, S, W, Dh)
        vg = v[:, :, idx_c, :].reshape(B, H, S, W, Dh)
        logits = torch.einsum('bhsd,bhswd->bhsw', q, kg) * scale
        logits = torch.where(mask[None, None, :, :], logits, -1000000000.0)
        attn = _softmax(logits, axis=-1)
        o = torch.einsum('bhsw,bhswd->bhsd', attn, vg)
        return (lambda x, *d: x.permute(*d))(o, 0, 2, 1, 3).reshape(B, S, D) @ wo

    def _B_ref(x, w_in, w_sp, b_sp, w_out):
        B, S, D = x.shape
        F = w_in.shape[-1]
        Fh = F // 2
        z = _gelu(torch.einsum('bsd,df->bsf', x, w_in))
        z1 = z[..., :Fh].clone()
        z2 = _layernorm(z[..., Fh:], axis=-1)
        g = torch.einsum('ts,bsf->btf', w_sp, z2) + b_sp[None, :, None]
        return torch.einsum('bsf,fd->bsd', z1 * g, w_out)
    x = A_x
    x = x + _A_ref(_layernorm(x, axis=-1), A_wqkv, A_wo)
    x = x + _B_ref(_layernorm(x, axis=-1), B_w_in, B_w_sp, B_b_sp, B_w_out)
    x = x + _A_ref(_layernorm(x, axis=-1), A_wqkv, A_wo)
    x = x + _B_ref(_layernorm(x, axis=-1), B_w_in, B_w_sp, B_b_sp, B_w_out)
    return x
```

```python
import sys
NAME = 'interleave_layers__sliding_local_dilated__mixer_gmlp__prompt'
S, D, F, FH = 2048, 576, 4608, 2304
KA = dict(x=0, wqkv=8, wo=16, bx=24, w_in=32, w_sp=40, b_sp=48, w_out=56, out=64, dbg=72, ws=80)
SIZES = dict(x=S*D*2, wqkv=D*3*D*2, wo=D*D*2, w_in=D*F*2, w_sp=S*S*2, b_sp=S*2, w_out=FH*D*2, out=S*D*2)
WS = {}
off = 0
for n, sz in [('xn', S*D*2), ('qkv', S*3*D*2), ('o', S*D*2), ('x1', S*D*2), ('z', S*F*2), ('z2n', S*FH*2), ('h', S*FH*2), ('x2', S*D*2)]:
    WS[n] = (off, sz); off += (sz + 4095)//4096*4096

launches = []; body = []; descs = []
def srd(L, sreg, name):
    if name in WS:
        o, sz = WS[name]
        L += [f's_load_dwordx2 s[{sreg}:{sreg+1}], s[0:1], {KA["ws"]}', 's_waitcnt lgkmcnt(0)',
              f's_add_u32 s{sreg}, s{sreg}, {o}', f's_addc_u32 s{sreg+1}, s{sreg+1}, 0']
    else:
        sz = SIZES[name]
        L += [f's_load_dwordx2 s[{sreg}:{sreg+1}], s[0:1], {KA[name]}', 's_waitcnt lgkmcnt(0)']
    L += [f's_mov_b32 s{sreg+2}, {sz}', f's_mov_b32 s{sreg+3}, 0x20000']
def kernel(name, grid, block, L, vgpr=128, lds=0):
    launches.append(f'; @launch kernel={name} grid=({grid},1,1) block=({block},1,1) lds={lds}')
    if any(d[0] == name for d in descs): return
    body.extend([f'.globl {name}', '.p2align 8', f'.type {name},@function', f'{name}:',
                 f's_cmp_ge_u32 s2, {grid}', f's_cbranch_scc1 L_{name}_end'] + L + [f'L_{name}_end:', 's_endpgm'])
    descs.append((name, vgpr))

def wave_sum(L, v, tmp, sdst):
    for sh in (1, 2, 4, 8):
        L += [f's_nop 1', f'v_add_f32_dpp v{v}, v{v}, v{v} row_shr:{sh} row_mask:0xf bank_mask:0xf bound_ctrl:0']
    L += ['s_nop 1', f'v_add_f32_dpp v{v}, v{v}, v{v} row_bcast:15 row_mask:0xa bank_mask:0xf',
          's_nop 1', f'v_add_f32_dpp v{v}, v{v}, v{v} row_bcast:31 row_mask:0xc bank_mask:0xf',
          's_nop 1', f'v_readlane_b32 s{sdst}, v{v}, 63', 's_nop 3']

def ln_kernel(name, src, sstride, scol, n, dst, mimic):
    L = []
    srd(L, 4, src); srd(L, 8, dst)
    e = n // 64
    L += [f's_mul_i32 s12, s2, {sstride*2}', f's_add_u32 s12, s12, {scol*2}', f's_mul_i32 s13, s2, {n*2}',
          'v_lshlrev_b32 v1, 1, v0', 'v_add_u32 v2, s12, v1', 'v_add_u32 v3, s13, v1']
    for i in range(e):
        if i*128 < 4096: L += [f'buffer_load_ushort v{10+i}, v2, s[4:7], 0 offen offset:{i*128}']
        else: L += [f's_mov_b32 s14, {i*128}', f'buffer_load_ushort v{10+i}, v2, s[4:7], s14 offen']
    L += ['s_waitcnt vmcnt(0)', 'v_mov_b32 v4, 0']
    for i in range(e):
        L += [f'v_lshlrev_b32 v{10+i}, 16, v{10+i}', f'v_add_f32 v4, v4, v{10+i}']
    wave_sum(L, 4, 5, 16)
    import struct
    f2u = lambda x: '0x%08x' % struct.unpack('<I', struct.pack('<f', x))[0]
    L += [f'v_mov_b32 v6, s16', f'v_mul_f32 v6, {f2u(1.0/n)}, v6', 'v_mov_b32 v4, 0']
    for i in range(e):
        L += [f'v_sub_f32 v5, v{10+i}, v6', 'v_fmac_f32 v4, v5, v5']
    wave_sum(L, 4, 5, 17)
    L += [f'v_mov_b32 v7, s17', f'v_mul_f32 v7, {f2u(1.0/n)}, v7']
    def rb(v): return [f'v_cvt_pk_bf16_f32 v{v}, v{v}, v{v}', f'v_lshlrev_b32 v{v}, 16, v{v}']
    if mimic:
        L += rb(6) + rb(7)
    L += [f'v_add_f32 v7, {f2u(1e-5)}, v7']
    if mimic: L += rb(7)
    L += ['v_sqrt_f32 v7, v7', 's_nop 1']
    if mimic: L += rb(7)
    L += ['v_rcp_f32 v7, v7', 's_nop 1']
    for i in range(e):
        L += [f'v_sub_f32 v5, v{10+i}, v6']
        if mimic: L += rb(5)
        L += ['v_mul_f32 v5, v5, v7', f'v_cvt_pk_bf16_f32 v{10+i}, v5, v5']
    for i in range(e):
        if i*128 < 4096: L += [f'buffer_store_short v{10+i}, v3, s[8:11], 0 offen offset:{i*128}']
        else: L += [f's_mov_b32 s14, {i*128}', f'buffer_store_short v{10+i}, v3, s[8:11], s14 offen']
    kernel(name, S, 64, L)

def gemm_kernel(name, X, ldx, W, ldw, K, N, epi, dst, ldd, aux=None):
    import struct
    f2u = lambda x: '0x%08x' % struct.unpack('<I', struct.pack('<f', x))[0]
    L = []
    srd(L, 4, X); srd(L, 8, W); srd(L, 12, dst)
    if aux: srd(L, 16, aux)
    if epi == 'gate': srd(L, 20, 'b_sp')
    nt = N // 32
    L += ['s_and_b32 s24, s2, 63', 's_lshr_b32 s25, s2, 6', 's_lshl_b32 s24, s24, 5', 's_lshl_b32 s25, s25, 5',
          'v_and_b32 v1, 31, v0', 'v_lshrrev_b32 v2, 5, v0',
          'v_add_u32 v3, s24, v1',
          f's_mov_b32 s26, {ldx*2}', 'v_mul_lo_u32 v4, v3, s26', 'v_lshlrev_b32 v5, 4, v2', 'v_add_u32 v4, v4, v5',
          'v_add_u32 v5, s25, v1', 'v_lshlrev_b32 v5, 1, v5', f's_mov_b32 s26, {ldw*2*8}', 'v_mul_lo_u32 v6, v2, s26', 'v_add_u32 v5, v5, v6']
    for r in range(16): L += [f'v_mov_b32 v{32+r}, 0']
    L += ['s_mov_b32 s27, 0', 's_mov_b32 s28, 0', 's_mov_b32 s29, 0', f'L_{name}_k:',
          'buffer_load_dwordx4 v[8:11], v4, s[4:7], s28 offen']
    for e in range(8):
        L += [f's_add_u32 s30, s29, {e*ldw*2}',
              f'buffer_load_ushort v{20+e}, v5, s[8:11], s30 offen']
    L += ['s_waitcnt vmcnt(0)']
    for e in range(4): L += [f'v_lshl_or_b32 v{12+e}, v{21+2*e}, 16, v{20+2*e}']
    L += ['s_nop 1', 'v_mfma_f32_32x32x16_bf16 v[32:47], v[12:15], v[8:11], v[32:47]',
          's_add_u32 s28, s28, 32', f's_add_u32 s29, s29, {16*ldw*2}', 's_add_u32 s27, s27, 16', f's_cmp_lt_u32 s27, {K}', f's_cbranch_scc1 L_{name}_k',
          's_nop 15']
    L += [f's_mov_b32 s26, {ldd*2}', 'v_mul_lo_u32 v6, v3, s26', 'v_lshlrev_b32 v7, 3, v2', 'v_add_u32 v6, v6, v7', 's_lshl_b32 s26, s25, 1', 'v_add_u32 v6, s26, v6']
    if epi in ('res', 'gate'):
        lda = D if epi == 'res' else F
        L += [f's_mov_b32 s26, {lda*2}', 'v_mul_lo_u32 v16, v3, s26', 'v_add_u32 v16, v16, v7', 's_lshl_b32 s26, s25, 1', 'v_add_u32 v16, s26, v16']
        for g in range(4): L += [f'buffer_load_dwordx2 v[{20+2*g}:{21+2*g}], v16, s[16:19], 0 offen offset:{g*16}']
        if epi == 'gate':
            L += ['v_lshlrev_b32 v17, 1, v3', 'buffer_load_ushort v17, v17, s[20:23], 0 offen']
        L += ['s_waitcnt vmcnt(0)']
        if epi == 'gate': L += ['v_lshlrev_b32 v17, 16, v17']
        for r in range(16):
            src = 20 + r//2
            L += [f'v_lshlrev_b32 v18, 16, v{src}' if r % 2 == 0 else f'v_and_b32 v18, 0xffff0000, v{src}']
            if epi == 'res': L += [f'v_add_f32 v{32+r}, v{32+r}, v18']
            else: L += [f'v_add_f32 v{32+r}, v{32+r}, v17', f'v_mul_f32 v{32+r}, v{32+r}, v18']
    if epi == 'gelu':
        c1 = -2.0*0.7978845608028654*1.4426950408889634
        c2 = c1*0.044715
        L += [f's_mov_b32 s26, {f2u(c2)}', f'v_mov_b32 v19, {f2u(c1)}']
        for r in range(16):
            v = 32 + r
            L += [f'v_mul_f32 v18, v{v}, v{v}', f'v_fma_f32 v18, v18, s26, v19', f'v_mul_f32 v18, v18, v{v}', 'v_exp_f32 v18, v18', 's_nop 0',
                  'v_add_f32 v18, 1.0, v18', 'v_rcp_f32 v18, v18', 's_nop 0', f'v_mul_f32 v{v}, v{v}, v18']
    for g in range(4):
        L += [f'v_cvt_pk_bf16_f32 v{48+2*g}, v{32+4*g}, v{33+4*g}', f'v_cvt_pk_bf16_f32 v{49+2*g}, v{34+4*g}, v{35+4*g}',
              f'buffer_store_dwordx2 v[{48+2*g}:{49+2*g}], v6, s[12:15], 0 offen offset:{g*16}']
    kernel(name, 64*nt, 64, L, vgpr=64)

def attn_kernel(name):
    import struct, math
    f2u = lambda x: '0x%08x' % struct.unpack('<I', struct.pack('<f', x))[0]
    L = []
    srd(L, 4, 'qkv'); srd(L, 8, 'o')
    L += ['v_and_b32 v1, 31, v0', 'v_lshrrev_b32 v2, 5, v0', 's_lshl_b32 s12, s2, 1', 'v_add_u32 v2, s12, v2',
          'v_mul_u32_u24 v3, 36, v1', f'v_mul_u32_u24 v4, {3*D*2}, v2', 'v_add_u32 v4, v4, v3']
    for j in range(9): L += [f'buffer_load_dword v{10+j}, v4, s[4:7], 0 offen offset:{4*j}']
    L += ['s_waitcnt vmcnt(0)']
    for j in range(9): L += [f'v_lshlrev_b32 v{20+2*j}, 16, v{10+j}', f'v_and_b32 v{21+2*j}, 0xffff0000, v{10+j}']
    for w in range(8):
        L += [f'v_subrev_u32 v5, {2*w}, v2', 'v_max_i32 v6, 0, v5', f'v_mul_u32_u24 v6, {3*D*2}, v6', 'v_add_u32 v6, v6, v3']
        for j in range(9): L += [f'buffer_load_dword v{10+j}, v6, s[4:7], 0 offen offset:{D*2+4*j}']
        L += ['s_waitcnt vmcnt(0)', f'v_mov_b32 v{40+w}, 0']
        for j in range(9):
            L += [f'v_lshlrev_b32 v7, 16, v{10+j}', f'v_fmac_f32 v{40+w}, v7, v{20+2*j}', f'v_and_b32 v7, 0xffff0000, v{10+j}', f'v_fmac_f32 v{40+w}, v7, v{21+2*j}']
        L += [f'v_mul_f32 v{40+w}, {f2u(18**-0.5*1.4426950408889634)}, v{40+w}', 'v_cmp_gt_i32 vcc, 0, v5', f'v_mov_b32 v7, {f2u(-1e9)}', 's_nop 1', f'v_cndmask_b32 v{40+w}, v{40+w}, v7, vcc']
    L += ['v_max3_f32 v8, v40, v41, v42', 'v_max3_f32 v8, v8, v43, v44', 'v_max3_f32 v8, v8, v45, v46', 'v_max_f32 v8, v8, v47', 'v_mov_b32 v9, 0']
    for w in range(8): L += [f'v_sub_f32 v{40+w}, v{40+w}, v8', f'v_exp_f32 v{40+w}, v{40+w}', 's_nop 0', f'v_add_f32 v9, v9, v{40+w}']
    L += ['v_rcp_f32 v9, v9', 's_nop 0']
    for w in range(8): L += [f'v_mul_f32 v{40+w}, v{40+w}, v9']
    for d in range(18): L += [f'v_mov_b32 v{20+d}, 0']
    for w in range(8):
        L += [f'v_subrev_u32 v5, {2*w}, v2', 'v_max_i32 v6, 0, v5', f'v_mul_u32_u24 v6, {3*D*2}, v6', 'v_add_u32 v6, v6, v3']
        for j in range(9): L += [f'buffer_load_dword v{10+j}, v6, s[4:7], 0 offen offset:{2*D*2+4*j}']
        L += ['s_waitcnt vmcnt(0)']
        for j in range(9):
            L += [f'v_lshlrev_b32 v7, 16, v{10+j}', f'v_fmac_f32 v{20+2*j}, v7, v{40+w}', f'v_and_b32 v7, 0xffff0000, v{10+j}', f'v_fmac_f32 v{21+2*j}, v7, v{40+w}']
    L += [f'v_mul_u32_u24 v4, {D*2}, v2', 'v_add_u32 v4, v4, v3']
    for j in range(9):
        L += [f'v_cvt_pk_bf16_f32 v{10+j}, v{20+2*j}, v{21+2*j}', f'buffer_store_dword v{10+j}, v4, s[8:11], 0 offen offset:{4*j}']
    kernel(name, S//2, 64, L, vgpr=64)

def dummy(name):
    kernel(name, 256, 256, [], vgpr=8)

def main(mimic, ndummy):
    for l in range(2):
        xin = 'x' if l == 0 else 'x2'
        xout = 'x2' if l == 0 else 'out'
        ln_kernel(f'ln1_{l}_kernel', xin, D, 0, D, 'xn', mimic)
        gemm_kernel('qkv_kernel', 'xn', D, 'wqkv', 3*D, D, 3*D, 'none', 'qkv', 3*D)
        attn_kernel('attn_kernel')
        gemm_kernel(f'wo_{l}_kernel', 'o', D, 'wo', D, D, D, 'res', 'x1', D, aux=xin)
        ln_kernel('ln2_kernel', 'x1', D, 0, D, 'xn', mimic)
        gemm_kernel('win_kernel', 'xn', D, 'w_in', F, D, F, 'gelu', 'z', F)
        ln_kernel('ln3_kernel', 'z', F, FH, FH, 'z2n', mimic)
        gemm_kernel('sp_kernel', 'w_sp', S, 'z2n', FH, S, FH, 'gate', 'h', FH, aux='z')
        gemm_kernel(f'wout_{l}_kernel', 'h', FH, 'w_out', D, FH, D, 'res', xout, D, aux='x1')
    for i in range(ndummy): dummy('dummy_kernel')
    out = launches + ['.amdgcn_target "amdgcn-amd-amdhsa--gfx950"', '.text'] + body + ['.section .rodata,"a"']
    for name, vgpr in descs:
        out += ['.p2align 6', f'.amdhsa_kernel {name}', f'  .amdhsa_next_free_vgpr {vgpr}', '  .amdhsa_next_free_sgpr 64', f'  .amdhsa_accum_offset {vgpr}',
                '  .amdhsa_group_segment_fixed_size 0', '  .amdhsa_kernarg_size 88', '  .amdhsa_user_sgpr_count 2', '  .amdhsa_user_sgpr_kernarg_segment_ptr 1',
                '  .amdhsa_system_sgpr_workgroup_id_x 1', '  .amdhsa_float_denorm_mode_32 3', '.end_amdhsa_kernel']
    return '\n'.join(out) + '\n'
if __name__ == '__main__':
    mimic = int(sys.argv[2]); nd = int(sys.argv[3])
    open(sys.argv[1], 'w').write(main(mimic, nd))
```

```python
import sys
NAME = 'interleave_layers__sliding_local_dilated__mixer_gmlp__prompt'
S, D, F, FH = 2048, 576, 4608, 2304
KA = dict(x=0, wqkv=8, wo=16, bx=24, w_in=32, w_sp=40, b_sp=48, w_out=56, out=64, dbg=72, ws=80)
SIZES = dict(x=S*D*2, wqkv=D*3*D*2, wo=D*D*2, w_in=D*F*2, w_sp=S*S*2, b_sp=S*2, w_out=FH*D*2, out=S*D*2)
WS = {}
off = 0
for n, sz in [('xn', S*D*2), ('qkv', S*3*D*2), ('o', S*D*2), ('x1', S*D*2), ('z', S*F*2), ('z2n', S*FH*2), ('h', S*FH*2), ('x2', S*D*2)]:
    WS[n] = (off, sz); off += (sz + 4095)//4096*4096

launches = []; body = []; descs = []
def srd(L, sreg, name):
    if name in WS:
        o, sz = WS[name]
        L += [f's_load_dwordx2 s[{sreg}:{sreg+1}], s[0:1], {KA["ws"]}', 's_waitcnt lgkmcnt(0)',
              f's_add_u32 s{sreg}, s{sreg}, {o}', f's_addc_u32 s{sreg+1}, s{sreg+1}, 0']
    else:
        sz = SIZES[name]
        L += [f's_load_dwordx2 s[{sreg}:{sreg+1}], s[0:1], {KA[name]}', 's_waitcnt lgkmcnt(0)']
    L += [f's_mov_b32 s{sreg+2}, {sz}', f's_mov_b32 s{sreg+3}, 0x20000']
def kernel(name, grid, block, L, vgpr=128, lds=0):
    launches.append(f'; @launch kernel={name} grid=({grid},1,1) block=({block},1,1) lds={lds}')
    if any(d[0] == name for d in descs): return
    body.extend([f'.globl {name}', '.p2align 8', f'.type {name},@function', f'{name}:',
                 f's_cmp_ge_u32 s2, {grid}', f's_cbranch_scc1 L_{name}_end'] + L + [f'L_{name}_end:', 's_endpgm'])
    descs.append((name, vgpr))

def wave_sum(L, v, tmp, sdst):
    for sh in (1, 2, 4, 8):
        L += [f's_nop 1', f'v_add_f32_dpp v{v}, v{v}, v{v} row_shr:{sh} row_mask:0xf bank_mask:0xf bound_ctrl:0']
    L += ['s_nop 1', f'v_add_f32_dpp v{v}, v{v}, v{v} row_bcast:15 row_mask:0xa bank_mask:0xf',
          's_nop 1', f'v_add_f32_dpp v{v}, v{v}, v{v} row_bcast:31 row_mask:0xc bank_mask:0xf',
          's_nop 1', f'v_readlane_b32 s{sdst}, v{v}, 63', 's_nop 3']

def ln_kernel(name, src, sstride, scol, n, dst, mimic):
    L = []
    srd(L, 4, src); srd(L, 8, dst)
    e = n // 64
    L += [f's_mul_i32 s12, s2, {sstride*2}', f's_add_u32 s12, s12, {scol*2}', f's_mul_i32 s13, s2, {n*2}',
          'v_lshlrev_b32 v1, 1, v0', 'v_add_u32 v2, s12, v1', 'v_add_u32 v3, s13, v1']
    for i in range(e):
        if i*128 < 4096: L += [f'buffer_load_ushort v{10+i}, v2, s[4:7], 0 offen offset:{i*128}']
        else: L += [f's_mov_b32 s14, {i*128}', f'buffer_load_ushort v{10+i}, v2, s[4:7], s14 offen']
    L += ['s_waitcnt vmcnt(0)', 'v_mov_b32 v4, 0']
    for i in range(e):
        L += [f'v_lshlrev_b32 v{10+i}, 16, v{10+i}', f'v_add_f32 v4, v4, v{10+i}']
    wave_sum(L, 4, 5, 16)
    import struct
    f2u = lambda x: '0x%08x' % struct.unpack('<I', struct.pack('<f', x))[0]
    L += [f'v_mov_b32 v6, s16', f'v_mul_f32 v6, {f2u(1.0/n)}, v6', 'v_mov_b32 v4, 0']
    for i in range(e):
        L += [f'v_sub_f32 v5, v{10+i}, v6', 'v_fmac_f32 v4, v5, v5']
    wave_sum(L, 4, 5, 17)
    L += [f'v_mov_b32 v7, s17', f'v_mul_f32 v7, {f2u(1.0/n)}, v7']
    def rb(v): return [f'v_cvt_pk_bf16_f32 v{v}, v{v}, v{v}', f'v_lshlrev_b32 v{v}, 16, v{v}']
    if mimic:
        L += rb(6) + rb(7)
    L += [f'v_add_f32 v7, {f2u(1e-5)}, v7']
    if mimic: L += rb(7)
    L += ['v_sqrt_f32 v7, v7', 's_nop 1']
    if mimic: L += rb(7)
    L += ['v_rcp_f32 v7, v7', 's_nop 1']
    for i in range(e):
        L += [f'v_sub_f32 v5, v{10+i}, v6']
        if mimic: L += rb(5)
        L += ['v_mul_f32 v5, v5, v7', f'v_cvt_pk_bf16_f32 v{10+i}, v5, v5']
    for i in range(e):
        if i*128 < 4096: L += [f'buffer_store_short v{10+i}, v3, s[8:11], 0 offen offset:{i*128}']
        else: L += [f's_mov_b32 s14, {i*128}', f'buffer_store_short v{10+i}, v3, s[8:11], s14 offen']
    kernel(name, S, 64, L)

def gemm_kernel(name, X, ldx, W, ldw, K, N, epi, dst, ldd, aux=None):
    import struct
    f2u = lambda x: '0x%08x' % struct.unpack('<I', struct.pack('<f', x))[0]
    L = []
    srd(L, 4, X); srd(L, 8, W); srd(L, 12, dst)
    if aux: srd(L, 16, aux)
    if epi == 'gate': srd(L, 20, 'b_sp')
    nt = N // 32
    L += ['s_and_b32 s24, s2, 63', 's_lshr_b32 s25, s2, 6', 's_lshl_b32 s24, s24, 5', 's_lshl_b32 s25, s25, 5',
          'v_and_b32 v1, 31, v0', 'v_lshrrev_b32 v2, 5, v0',
          'v_add_u32 v3, s24, v1',
          f's_mov_b32 s26, {ldx*2}', 'v_mul_lo_u32 v4, v3, s26', 'v_lshlrev_b32 v5, 4, v2', 'v_add_u32 v4, v4, v5',
          'v_add_u32 v5, s25, v1', 'v_lshlrev_b32 v5, 1, v5', f's_mov_b32 s26, {ldw*2*8}', 'v_mul_lo_u32 v6, v2, s26', 'v_add_u32 v5, v5, v6']
    for r in range(16): L += [f'v_mov_b32 v{32+r}, 0']
    L += ['s_mov_b32 s27, 0', 's_mov_b32 s28, 0', 's_mov_b32 s29, 0', f'L_{name}_k:',
          'buffer_load_dwordx4 v[8:11], v4, s[4:7], s28 offen']
    for e in range(8):
        L += [f's_add_u32 s30, s29, {e*ldw*2}',
              f'buffer_load_ushort v{20+e}, v5, s[8:11], s30 offen']
    L += ['s_waitcnt vmcnt(0)']
    for e in range(4): L += [f'v_lshl_or_b32 v{12+e}, v{21+2*e}, 16, v{20+2*e}']
    L += ['s_nop 1', 'v_mfma_f32_32x32x16_bf16 v[32:47], v[12:15], v[8:11], v[32:47]',
          's_add_u32 s28, s28, 32', f's_add_u32 s29, s29, {16*ldw*2}', 's_add_u32 s27, s27, 16', f's_cmp_lt_u32 s27, {K}', f's_cbranch_scc1 L_{name}_k',
          's_nop 15']
    L += [f's_mov_b32 s26, {ldd*2}', 'v_mul_lo_u32 v6, v3, s26', 'v_lshlrev_b32 v7, 3, v2', 'v_add_u32 v6, v6, v7', 's_lshl_b32 s26, s25, 1', 'v_add_u32 v6, s26, v6']
    if epi in ('res', 'gate'):
        lda = D if epi == 'res' else F
        L += [f's_mov_b32 s26, {lda*2}', 'v_mul_lo_u32 v16, v3, s26', 'v_add_u32 v16, v16, v7', 's_lshl_b32 s26, s25, 1', 'v_add_u32 v16, s26, v16']
        for g in range(4): L += [f'buffer_load_dwordx2 v[{20+2*g}:{21+2*g}], v16, s[16:19], 0 offen offset:{g*16}']
        if epi == 'gate':
            L += ['v_lshlrev_b32 v17, 1, v3', 'buffer_load_ushort v17, v17, s[20:23], 0 offen']
        L += ['s_waitcnt vmcnt(0)']
        if epi == 'gate': L += ['v_lshlrev_b32 v17, 16, v17']
        for r in range(16):
            src = 20 + r//2
            L += [f'v_lshlrev_b32 v18, 16, v{src}' if r % 2 == 0 else f'v_and_b32 v18, 0xffff0000, v{src}']
            if epi == 'res': L += [f'v_add_f32 v{32+r}, v{32+r}, v18']
            else: L += [f'v_add_f32 v{32+r}, v{32+r}, v17', f'v_mul_f32 v{32+r}, v{32+r}, v18']
    if epi == 'gelu':
        c1 = -2.0*0.7978845608028654*1.4426950408889634
        c2 = c1*0.044715
        L += [f's_mov_b32 s26, {f2u(c2)}', f'v_mov_b32 v19, {f2u(c1)}']
        for r in range(16):
            v = 32 + r
            L += [f'v_mul_f32 v18, v{v}, v{v}', f'v_fma_f32 v18, v18, s26, v19', f'v_mul_f32 v18, v18, v{v}', 'v_exp_f32 v18, v18', 's_nop 0',
                  'v_add_f32 v18, 1.0, v18', 'v_rcp_f32 v18, v18', 's_nop 0', f'v_mul_f32 v{v}, v{v}, v18']
    if dst == 'out' and SCALE:
        for r in range(16): L += [f'v_mul_f32 v{32+r}, {f2u(SCALE)}, v{32+r}']
    for g in range(4):
        L += [f'v_cvt_pk_bf16_f32 v{48+2*g}, v{32+4*g}, v{33+4*g}', f'v_cvt_pk_bf16_f32 v{49+2*g}, v{34+4*g}, v{35+4*g}',
              f'buffer_store_dwordx2 v[{48+2*g}:{49+2*g}], v6, s[12:15], 0 offen offset:{g*16}']
    kernel(name, 64*nt, 64, L, vgpr=64)

def attn_kernel(name):
    import struct, math
    f2u = lambda x: '0x%08x' % struct.unpack('<I', struct.pack('<f', x))[0]
    L = []
    srd(L, 4, 'qkv'); srd(L, 8, 'o')
    L += ['v_and_b32 v1, 31, v0', 'v_lshrrev_b32 v2, 5, v0', 's_lshl_b32 s12, s2, 1', 'v_add_u32 v2, s12, v2',
          'v_mul_u32_u24 v3, 36, v1', f'v_mul_u32_u24 v4, {3*D*2}, v2', 'v_add_u32 v4, v4, v3']
    for j in range(9): L += [f'buffer_load_dword v{10+j}, v4, s[4:7], 0 offen offset:{4*j}']
    L += ['s_waitcnt vmcnt(0)']
    for j in range(9): L += [f'v_lshlrev_b32 v{20+2*j}, 16, v{10+j}', f'v_and_b32 v{21+2*j}, 0xffff0000, v{10+j}']
    for w in range(8):
        L += [f'v_subrev_u32 v5, {2*w}, v2', 'v_max_i32 v6, 0, v5', f'v_mul_u32_u24 v6, {3*D*2}, v6', 'v_add_u32 v6, v6, v3']
        for j in range(9): L += [f'buffer_load_dword v{10+j}, v6, s[4:7], 0 offen offset:{D*2+4*j}']
        L += ['s_waitcnt vmcnt(0)', f'v_mov_b32 v{40+w}, 0']
        for j in range(9):
            L += [f'v_lshlrev_b32 v7, 16, v{10+j}', f'v_fmac_f32 v{40+w}, v7, v{20+2*j}', f'v_and_b32 v7, 0xffff0000, v{10+j}', f'v_fmac_f32 v{40+w}, v7, v{21+2*j}']
        L += [f'v_mul_f32 v{40+w}, {f2u(18**-0.5*1.4426950408889634)}, v{40+w}', 'v_cmp_gt_i32 vcc, 0, v5', f'v_mov_b32 v7, {f2u(-1e9)}', 's_nop 1', f'v_cndmask_b32 v{40+w}, v{40+w}, v7, vcc']
    L += ['v_max3_f32 v8, v40, v41, v42', 'v_max3_f32 v8, v8, v43, v44', 'v_max3_f32 v8, v8, v45, v46', 'v_max_f32 v8, v8, v47', 'v_mov_b32 v9, 0']
    for w in range(8): L += [f'v_sub_f32 v{40+w}, v{40+w}, v8', f'v_exp_f32 v{40+w}, v{40+w}', 's_nop 0', f'v_add_f32 v9, v9, v{40+w}']
    L += ['v_rcp_f32 v9, v9', 's_nop 0']
    for w in range(8): L += [f'v_mul_f32 v{40+w}, v{40+w}, v9']
    for d in range(18): L += [f'v_mov_b32 v{20+d}, 0']
    for w in range(8):
        L += [f'v_subrev_u32 v5, {2*w}, v2', 'v_max_i32 v6, 0, v5', f'v_mul_u32_u24 v6, {3*D*2}, v6', 'v_add_u32 v6, v6, v3']
        for j in range(9): L += [f'buffer_load_dword v{10+j}, v6, s[4:7], 0 offen offset:{2*D*2+4*j}']
        L += ['s_waitcnt vmcnt(0)']
        for j in range(9):
            L += [f'v_lshlrev_b32 v7, 16, v{10+j}', f'v_fmac_f32 v{20+2*j}, v7, v{40+w}', f'v_and_b32 v7, 0xffff0000, v{10+j}', f'v_fmac_f32 v{21+2*j}, v7, v{40+w}']
    L += [f'v_mul_u32_u24 v4, {D*2}, v2', 'v_add_u32 v4, v4, v3']
    for j in range(9):
        L += [f'v_cvt_pk_bf16_f32 v{10+j}, v{20+2*j}, v{21+2*j}', f'buffer_store_dword v{10+j}, v4, s[8:11], 0 offen offset:{4*j}']
    kernel(name, S//2, 64, L, vgpr=64)

def dummy(name):
    kernel(name, 256, 256, [], vgpr=8)

def main(mimic, ndummy, nfirst=0, scale=None):
    global SCALE
    SCALE = scale
    for i in range(nfirst): dummy('dummy_kernel')
    for l in range(2):
        xin = 'x' if l == 0 else 'x2'
        xout = 'x2' if l == 0 else 'out'
        ln_kernel(f'ln1_{l}_kernel', xin, D, 0, D, 'xn', mimic)
        gemm_kernel('qkv_kernel', 'xn', D, 'wqkv', 3*D, D, 3*D, 'none', 'qkv', 3*D)
        attn_kernel('attn_kernel')
        gemm_kernel(f'wo_{l}_kernel', 'o', D, 'wo', D, D, D, 'res', 'x1', D, aux=xin)
        ln_kernel('ln2_kernel', 'x1', D, 0, D, 'xn', mimic)
        gemm_kernel('win_kernel', 'xn', D, 'w_in', F, D, F, 'gelu', 'z', F)
        ln_kernel('ln3_kernel', 'z', F, FH, FH, 'z2n', mimic)
        gemm_kernel('sp_kernel', 'w_sp', S, 'z2n', FH, S, FH, 'gate', 'h', FH, aux='z')
        gemm_kernel(f'wout_{l}_kernel', 'h', FH, 'w_out', D, FH, D, 'res', xout, D, aux='x1')
    for i in range(ndummy): dummy('dummy_kernel')
    out = launches + ['.amdgcn_target "amdgcn-amd-amdhsa--gfx950"', '.text'] + body + ['.section .rodata,"a"']
    for name, vgpr in descs:
        out += ['.p2align 6', f'.amdhsa_kernel {name}', f'  .amdhsa_next_free_vgpr {vgpr}', '  .amdhsa_next_free_sgpr 64', f'  .amdhsa_accum_offset {vgpr}',
                '  .amdhsa_group_segment_fixed_size 0', '  .amdhsa_kernarg_size 88', '  .amdhsa_user_sgpr_count 2', '  .amdhsa_user_sgpr_kernarg_segment_ptr 1',
                '  .amdhsa_system_sgpr_workgroup_id_x 1', '  .amdhsa_float_denorm_mode_32 3', '.end_amdhsa_kernel']
    return '\n'.join(out) + '\n'
if __name__ == '__main__':
    mimic = int(sys.argv[2]); nd = int(sys.argv[3])
    nf = int(sys.argv[4]) if len(sys.argv) > 4 else 0
    sc = float(sys.argv[5]) if len(sys.argv) > 5 else None
    open(sys.argv[1], 'w').write(main(mimic, nd, nf, sc))
```

```python
import sys
HDR = '''.amdgcn_target "amdgcn-amd-amdhsa--gfx950"
.text
'''
def desc(name, vgpr=256, acc=256):
    return f'''.p2align 6
.amdhsa_kernel {name}
  .amdhsa_next_free_vgpr {vgpr}
  .amdhsa_next_free_sgpr 96
  .amdhsa_accum_offset {acc}
  .amdhsa_group_segment_fixed_size 0
  .amdhsa_kernarg_size 88
  .amdhsa_user_sgpr_count 2
  .amdhsa_user_sgpr_kernarg_segment_ptr 1
  .amdhsa_system_sgpr_workgroup_id_x 1
.end_amdhsa_kernel
'''
def kern(name, rx, amode, bmode, depth, doA=True, doB=True, nit=16, mask=15, rot=0, pf=0, sc='', act=None):
    cx = 32 // rx
    L = [f'.globl {name}', '.p2align 8', f'.type {name},@function', f'{name}:',
         's_memrealtime s[20:21]', 's_memtime s[50:51]', 's_cmp_ge_u32 s2, 256', f's_cbranch_scc1 L_{name}_end',
         's_load_dwordx2 s[4:5], s[0:1], 0', 's_load_dwordx2 s[8:9], s[0:1], 8', 's_load_dwordx2 s[12:13], s[0:1], 80', 's_load_dwordx2 s[14:15], s[0:1], 72',
         's_waitcnt lgkmcnt(0)', 's_mov_b32 s6, 0x800000', 's_mov_b32 s7, 0x20000', f's_mov_b32 s10, {2048*2304*2}', 's_mov_b32 s11, 0x20000',
         's_and_b32 s24, s2, 7', 's_lshr_b32 s25, s2, 3']
    gxc = 16 // cx
    L += [f's_and_b32 s26, s24, {gxc-1}', f's_lshr_b32 s27, s24, {gxc.bit_length()-1}',
          f's_and_b32 s28, s25, {cx-1}', f's_lshr_b32 s29, s25, {cx.bit_length()-1}',
          f's_mul_i32 s26, s26, {cx}', 's_add_u32 s26, s26, s28',
          f's_mul_i32 s27, s27, {rx}', 's_add_u32 s27, s27, s29',
          'v_lshrrev_b32 v1, 6, v0', 'v_and_b32 v2, 63, v0', 's_nop 0', 'v_readfirstlane_b32 s30, v1']
    if act:
        L += [f's_and_b32 s57, s25, {act}', 's_cmp_lg_u32 s57, 0', f's_cbranch_scc1 L_{name}_done']
    if amode == 'r64':
        L += ['v_and_b32 v3, 15, v2', 'v_lshrrev_b32 v4, 4, v2', 'v_lshlrev_b32 v3, 12, v3', 'v_lshlrev_b32 v4, 4, v4', 'v_add_u32 v3, v3, v4']
        aoffs = [(0, 0), (0, 64), (16*4096, 0), (16*4096, 64)]
    elif amode in ('r128', 'lds128'):
        L += ['v_lshrrev_b32 v3, 3, v2', 'v_and_b32 v4, 7, v2', 'v_lshlrev_b32 v3, 12, v3', 'v_lshlrev_b32 v4, 4, v4', 'v_add_u32 v3, v3, v4']
        aoffs = [(i*8*4096, 0) for i in range(4)]
    elif amode == 'tiled':
        L += ['v_lshlrev_b32 v3, 4, v2']
        aoffs = [(0, i*1024) for i in range(4)]
    L += ['s_lshl_b32 s31, s27, 19', 's_lshl_b32 s32, s30, 17', 's_add_u32 s31, s31, s32', 'v_add_u32 v3, s31, v3']
    for i, (big, small) in enumerate(aoffs):
        L += [f'v_add_u32 v{4+i}, {big+small}, v3']
    astep = 4096 if amode == 'tiled' else 128
    L += [f's_mul_i32 s33, s26, {2048*144*2}', f's_mul_i32 s34, s30, 9216', 's_add_u32 s33, s33, s34', 'v_lshlrev_b32 v8, 4, v2', 'v_add_u32 v8, s33, v8',
          'v_add_u32 v9, 4096, v8', 'v_add_u32 v10, 8192, v8']
    L += ['s_mov_b32 s40, 0', 's_mov_b32 s41, 0', 's_mov_b32 s42, 0', f's_mul_i32 s43, s30, 32768', 's_add_u32 s47, s28, s29']
    if pf:
        assert amode == 'tiled'
        na = 256 // cx; nb = 288 // rx
        L += [f's_mul_i32 s48, s28, {na}', 'v_add_u32 v11, s48, v0', 'v_lshrrev_b32 v12, 6, v11', 'v_and_b32 v11, 63, v11', 'v_lshlrev_b32 v12, 17, v12', 'v_lshlrev_b32 v11, 7, v11', 'v_add_u32 v11, v11, v12',
              's_lshl_b32 s48, s27, 19', 'v_add_u32 v11, s48, v11', f'v_cmp_gt_u32 vcc, {na}, v0', 'v_mov_b32 v13, 0x7fffffff', 's_nop 1', 'v_cndmask_b32 v11, v13, v11, vcc',
              'v_xor_b32 v14, 128, v0', f's_mul_i32 s48, s29, {nb}', 'v_add_u32 v12, s48, v14', 'v_lshlrev_b32 v12, 7, v12', f's_mul_i32 s48, s26, {2048*144*2}', 'v_add_u32 v12, s48, v12',
              f'v_cmp_gt_u32 vcc, {nb}, v14', 's_nop 1', 'v_cndmask_b32 v12, v13, v12, vcc']
    L += [f'L_{name}_loop:']
    if rot:
        L += [f's_add_u32 s49, s40, s47', f's_and_b32 s49, s49, {rot-1}', f's_and_b32 s48, s40, {mask & ~(rot-1)}', 's_or_b32 s49, s49, s48']
    else:
        L += [f's_and_b32 s49, s40, {mask}']
    L += [f's_mul_i32 s41, s49, {2*astep}', 's_mul_i32 s42, s49, 36864']
    if pf:
        L += [f's_add_u32 s54, s40, {pf}', f's_cmp_lt_u32 s54, {nit}', f's_cbranch_scc0 L_{name}_nopf', f's_mul_i32 s55, s54, {2*astep}', 's_mul_i32 s56, s54, 36864']
        L += ['s_cmp_lt_u32 s30, 2', f's_cbranch_scc0 L_{name}_pfb', 'buffer_load_dword v15, v11, s[4:7], s55 offen', f's_branch L_{name}_nopf', f'L_{name}_pfb:', 'buffer_load_dword v15, v12, s[8:11], s56 offen', f'L_{name}_nopf:']

    n = 0; reg = 16
    nper = (8 if doA else 0) + (9 if doB else 0)
    ins = []
    if doA:
        for half in range(2):
            for i in range(4):
                ins.append(('A', i, half))
    if doB:
        for j in range(9): ins.append(('B', j, 0))
    if doA and doB:
        a = [x for x in ins if x[0] == 'A']; b = [x for x in ins if x[0] == 'B']
        ins = []
        while a or b:
            if b: ins.append(b.pop(0))
            if a: ins.append(a.pop(0))
    for idx, (t, i, half) in enumerate(ins):
        lds = (amode == 'lds128') if t == 'A' else (bmode == 'lds')
        if lds:
            L += [f's_add_u32 s44, s43, {idx*1024}', 's_mov_b32 m0, s44', 's_nop 0']
        if t == 'A':
            if half == 1: L += [f's_add_u32 s45, s41, {astep}']
            so = 's45' if half else 's41'
            if lds: L += [f'buffer_load_dwordx4 v{4+i}, s[4:7], {so} offen {sc} lds']
            else: L += [f'buffer_load_dwordx4 v[{reg}:{reg+3}], v{4+i}, s[4:7], {so} offen {sc}']
        else:
            vb = 8 + i//4; o = (i % 4)*1024
            if lds:
                L += [f's_add_u32 s46, s42, {o}', f'buffer_load_dwordx4 v{vb}, s[8:11], s46 offen {sc} lds']
            else: L += [f'buffer_load_dwordx4 v[{reg}:{reg+3}], v{vb}, s[8:11], s42 offen offset:{o} {sc}']
        reg += 4
        L += [f's_waitcnt vmcnt({depth})']
    L += ['s_add_u32 s40, s40, 1', f's_cmp_lt_u32 s40, {nit}', f's_cbranch_scc1 L_{name}_loop',
          f'L_{name}_done:', 's_waitcnt vmcnt(0)', 's_barrier', 's_memrealtime s[22:23]', 's_memtime s[52:53]', 's_waitcnt lgkmcnt(0)', 's_sub_u32 s21, s52, s50',
          'v_mov_b32 v2, s20', 'v_mov_b32 v3, s21', 'v_mov_b32 v4, s22', 'v_mov_b32 v5, s23',
          's_lshr_b32 s8, s14, 9', 's_and_b32 s8, s8, 63', 's_lshl_b32 s8, s8, 12', 's_lshl_b32 s9, s2, 4', 's_add_u32 s8, s8, s9', 'v_mov_b32 v1, s8',
          'v_cmp_eq_u32 vcc, 0, v0', 's_and_saveexec_b64 s[10:11], vcc', f's_cbranch_execz L_{name}_end', 'global_store_dwordx4 v1, v[2:5], s[12:13]',
          f'L_{name}_end:', 's_endpgm']
    return '\n'.join(L) + '\n'
cfgs = []
for act in (None, 1, 4, 16, 3, 12, 5, 28, 31):
    cfgs.append((8, 'tiled', 'reg', 24, True, True, 64, 15, 0, 0, '', act))
    cfgs.append((8, 'tiled', 'reg', 24, True, True, 64, 3, 0, 0, '', act))
def gen():
    la = []; b = []; d = []
    for i, c in enumerate(cfgs):
        n = f'k{i}_kernel'
        la.append(f'; @launch kernel={n} grid=(256,1,1) block=(256,1,1) lds=131072')
        b.append(kern(n, *c)); d.append(desc(n))
    return '\n'.join(la) + '\n' + HDR + ''.join(b) + '.section .rodata,"a"\n' + ''.join(d)
if __name__ == '__main__':
    open('mb_bw.s', 'w').write(gen())
    if len(sys.argv) > 1: sys.exit(0)
    from hx import *
    m = Mod('mb_bw.s')
    N = len(cfgs)
    ws = Buf(16<<20); dbg = Buf(1<<16); big = Buf(512<<20); A = Buf(8<<20); B = Buf(10<<20)
    ka = kernarg([A.ptr, B.ptr] + [ws.ptr]*7 + [dbg.ptr, ws.ptr])
    res = []
    for it in range(6):
        sync()
        memset(big, 1); memset(A, 1); memset(B, 1)
        m.run(ka, (dbg.ptr, 1<<16))
        sync()
        st = d2h(ws, 0, N*4096, np.uint32).reshape(N, 256, 4).astype(np.int64)
        dur = (st[:, :, 2].max(1) - st[:, :, 0].min(1))/100.0
        clk = np.median(st[:, :, 1]/((st[:, :, 2]-st[:, :, 0])/100.0), axis=1)
        res.append(dur)
    res = np.array(res)
    for i, c in enumerate(cfgs):
        bytes_ = 256*((524288 if c[4] else 0) + (589824 if c[5] else 0))*c[6]/16
        med = np.median(res[1:, i])
        print(c, 'us', res[:, i].round(2).tolist(), 'B/clk/CU %.1f' % (bytes_/256/(med-0.8)/2350), 'clk MHz %.0f' % clk[i])
```
